```python
import torch

def _softmax(x, axis=-1):
    return torch.softmax(x, dim=axis)

def _gelu(x):
    return torch.nn.functional.gelu(x, approximate='tanh')

def _silu(x):
    return torch.nn.functional.silu(x)

def _sigmoid(x):
    return torch.sigmoid(x)

def _layernorm(x, axis=-1, eps=1e-05):
    m = x.mean(dim=axis, keepdim=True)
    v = x.var(dim=axis, keepdim=True, unbiased=False)
    return (x - m) / torch.sqrt(v + eps)

def _scatter_add(tgt, idx, src, axis=0):
    return tgt.clone().index_add_(axis, idx, src)

def _segment_sum(src, seg, n):
    out = torch.zeros((n,) + src.shape[1:], dtype=src.dtype)
    return out.index_add_(0, seg, src)

def _pad(x, pw):
    flat = tuple((v for pair in reversed(pw) for v in pair))
    return torch.nn.functional.pad(x, flat)
kernel_name = 'standalone__molecular_angular_painn__graph'

def setup_inputs():

    _w = lambda a: (lambda t: t.to(torch.bfloat16) if t.is_floating_point() else t)(torch.as_tensor(a))
    N, deg, D = (10000, 32, 128)
    n_rbf = max(16, 4)
    E = N * deg
    cutoff = 5.0
    freqs = (torch.arange(1, n_rbf + 1) * torch.pi / cutoff).to(float)
    return {'sv': _w((lambda *s: torch.randn(*s, dtype=torch.bfloat16) * 0.4)(N, 4, D) * 0.3), 'pos': _w((lambda *s: torch.randn(*s, dtype=torch.bfloat16) * 1.6)(N, 3) * 1.2), 'src': _w((lambda lo, hi, *s: torch.randint(lo, hi, s))(0, N, E).to(torch.int64)), 'dst': _w((lambda lo, hi, *s: torch.randint(lo, hi, s))(0, N, E).to(torch.int64)), 'freqs': _w(freqs), 'w_phi1': _w((lambda *s: torch.randn(*s, dtype=torch.bfloat16) * 3.2)(D, D) / D ** 0.5), 'w_phi2': _w((lambda *s: torch.randn(*s, dtype=torch.bfloat16) * 1.6)(D, 3 * D) / D ** 0.5), 'w_rbf': _w((lambda *s: torch.randn(*s, dtype=torch.bfloat16) * 1.6)(n_rbf, 3 * D) / n_rbf ** 0.5)}

def reference(sv, pos, src, dst, freqs, w_phi1, w_phi2, w_rbf):
    N, _, D = sv.shape
    E = src.shape[0]
    PI, cutoff = (3.141592653589793, 5.0)
    s, v = (sv[:, 0, :].clone(), sv[:, 1:, :].clone())
    r_vec = pos[src] - pos[dst]
    d = torch.sqrt((r_vec * r_vec).sum(-1) + 1e-08)
    r_hat = r_vec / d[:, None]
    rbf = torch.sin(d[:, None] * freqs[None, :]) / d[:, None]
    fcut = 0.5 * (torch.cos(PI * d / cutoff) + 1.0)
    fcut = torch.where(d < cutoff, fcut, 0.0 * d)
    Wf = rbf @ w_rbf * fcut[:, None]
    phi = (_silu(s @ w_phi1) @ w_phi2)[src]
    m = phi * Wf
    m_s, m_vv, m_vr = (m[:, :D].clone(), m[:, D:2 * D].clone(), m[:, 2 * D:].clone())
    ds = _segment_sum(m_s, dst, N)
    dv_e = m_vv[:, None, :] * v[src] + m_vr[:, None, :] * r_hat[:, :, None]
    dv = _segment_sum(dv_e.reshape(E, 3 * D), dst, N).reshape(N, 3, D)
    return sv + torch.concatenate([ds[:, None, :], dv], axis=1)
```

```python
N=10000; E=320000
NNODEWG=157; NEW=80; NMISC=16; NWG1=NNODEWG+NEW+NMISC
EPW=E//NEW
NB=64; BN=157; BMAGIC=6679; BSHIFT=20
T_DV=0; T_DS=10240000; RBF=12800000; BFRAG=RBF+65536; SEG=BFRAG+16384; REC=SEG+NB*NEW*4
REC_STRIDE=EPW*12
PART=1<<24
assert REC+NEW*REC_STRIDE<=PART and REC%128==0
ZERO_D16=False
```

```python
from asmlib import *
from consts import *

def srd(a, d, base_lo, nbytes, add=None):
    if add is None:
        a(f's_mov_b32 s{d}, s{base_lo}\ns_mov_b32 s{d+1}, s{base_lo+1}')
    else:
        a(f's_add_u32 s{d}, s{base_lo}, {add}\ns_addc_u32 s{d+1}, s{base_lo+1}, 0')
    a(f's_mov_b32 s{d+2}, {nbytes}\ns_mov_b32 s{d+3}, 0x00020000')

def scan64(a, v):
    for sh in (1,2,4,8):
        a(f'v_add_u32_dpp v{v}, v{v}, v{v} row_shr:{sh} row_mask:0xf bank_mask:0xf')
    a(f'v_add_u32_dpp v{v}, v{v}, v{v} row_bcast:15 row_mask:0xa bank_mask:0xf')
    a(f'v_add_u32_dpp v{v}, v{v}, v{v} row_bcast:31 row_mask:0xc bank_mask:0xf')

def gen_k1(a):
    a(f'''
    .globl prep_kernel
    .p2align 8
    .type prep_kernel,@function
    prep_kernel:
    s_cmp_ge_u32 s2, {NWG1}
    s_cbranch_scc1 L_k1_end
    s_load_dwordx16 s[4:19], s[0:1], 0
    s_load_dwordx2 s[20:21], s[0:1], 80
    v_and_b32 v1, 63, v0
    v_lshrrev_b32 v2, 6, v0
    v_readfirstlane_b32 s22, v2
    s_cmp_ge_u32 s2, {NNODEWG}
    s_cbranch_scc1 L_k1_other
    ''')
    node_role(a)
    a('L_k1_other:')
    a(f's_cmp_ge_u32 s2, {NNODEWG+NEW}\ns_cbranch_scc1 L_k1_misc')
    edge_role(a)
    a('L_k1_misc:')
    misc_role(a)
    a('L_k1_end:\ns_endpgm')

def node_role(a):
    SV,W1,W2,WS = 24,28,32,36
    a(f'''
    v_lshrrev_b32 v2, 4, v0                 ; node_l
    v_and_b32 v3, 15, v0                    ; c
    s_lshl_b32 s23, s2, 6
    v_add_u32 v33, s23, v2                  ; n
    v_lshlrev_b32 v4, 10, v33
    v_lshl_add_u32 v4, v3, 4, v4            ; voff_sv
    v_lshrrev_b32 v34, 4, v1                ; kb = l>>4
    s_and_b32 s40, s22, 1
    s_lshl_b32 s40, s40, 2
    v_or_b32 v5, s40, v34
    v_lshlrev_b32 v5, 1, v5
    v_xor_b32 v5, v5, v3                    ; pos ^ f   (l&15 == c)
    v_lshlrev_b32 v35, 4, v5                ; sw
    s_lshl_b32 s41, s22, 3
    v_add_u32 v6, s41, v34                  ; row = 8w + r4
    v_lshl_add_u32 v5, v6, 8, v35           ; voff1
    v_mul_u32_u24 v6, 0x300, v6
    v_add_u32 v6, v6, v35                   ; voff2
    s_lshl_b32 s42, s22, 11                 ; w*2048
    s_movk_i32 s43, 0x100
    s_movk_i32 s44, 0x200
    s_movk_i32 s45, 0x800
    s_movk_i32 s46, 0x900
    s_movk_i32 s47, 0xa00
    s_mov_b32 m0, s42
    s_waitcnt lgkmcnt(0)
    ''')
    srd(a,SV,4,10240000); srd(a,W1,14,32768); srd(a,W2,16,98304); srd(a,WS,20,12800000)
    a(f'''
    buffer_load_dwordx4 v[8:11], v4, s[{SV}:{SV+3}], 0 offen
    buffer_load_dwordx4 v5, s[{W1}:{W1+3}], 0 offen lds
    buffer_load_dwordx4 v5, s[{W1}:{W1+3}], 0 offen offset:1024 lds
    s_add_u32 s48, s42, 0x8000
    s_mov_b32 m0, s48
    s_add_u32 s48, s42, 0x10000
    buffer_load_dwordx4 v6, s[{W2}:{W2+3}], 0 offen lds
    buffer_load_dwordx4 v6, s[{W2}:{W2+3}], s45 offen offset:1024 lds
    s_mov_b32 m0, s48
    s_add_u32 s48, s42, 0x18000
    buffer_load_dwordx4 v6, s[{W2}:{W2+3}], s43 offen lds
    buffer_load_dwordx4 v6, s[{W2}:{W2+3}], s46 offen offset:1024 lds
    s_mov_b32 m0, s48
    s_nop 0
    buffer_load_dwordx4 v6, s[{W2}:{W2+3}], s44 offen lds
    buffer_load_dwordx4 v6, s[{W2}:{W2+3}], s47 offen offset:1024 lds
    buffer_load_dwordx4 v[12:15], v4, s[{SV}:{SV+3}], 0 offen offset:256
    buffer_load_dwordx4 v[16:19], v4, s[{SV}:{SV+3}], 0 offen offset:512
    buffer_load_dwordx4 v[20:23], v4, s[{SV}:{SV+3}], 0 offen offset:768
    v_and_b32 v7, 15, v2
    v_xor_b32 v7, v7, v3
    v_lshlrev_b32 v7, 4, v7
    v_lshl_add_u32 v7, v2, 8, v7
    v_add_u32 v24, 0x20000, v7
    s_and_b32 s40, s22, 7                   ; ft
    s_lshr_b32 s41, s22, 3                  ; nh
    v_bfe_u32 v25, v1, 2, 3                 ; g = (l>>2)&7
    v_xor_b32 v25, s40, v25
    v_lshlrev_b32 v25, 5, v25
    v_and_b32 v26, 3, v1
    v_lshl_add_u32 v25, v26, 3, v25
    v_bfe_u32 v26, v1, 2, 2
    v_lshl_add_u32 v26, v34, 3, v26         ; 8kb + r
    v_lshl_add_u32 v25, v26, 8, v25         ; aT
    v_add_u32 v26, 0x10000, v25             ; aT2
    s_lshl_b32 s48, s41, 13
    v_lshlrev_b32 v27, 8, v3
    v_add_u32 v27, s48, v27                 ; (32nh+n15)*256
    v_xor_b32 v28, v34, v3
    v_lshl_add_u32 v28, v28, 4, v27
    v_add_u32 v28, 0x20000, v28
    v_xor_b32 v29, 64, v28
    v_xor_b32 v30, 0x80, v28
    v_xor_b32 v31, 0xc0, v28
    s_lshl_b32 s48, s40, 1
    v_lshrrev_b32 v32, 1, v34
    v_add_u32 v32, s48, v32
    v_xor_b32 v32, v32, v3
    v_lshl_add_u32 v27, v32, 4, v27
    v_and_b32 v32, 1, v34
    v_lshl_add_u32 v27, v32, 3, v27
    v_add_u32 v32, 0x20000, v27
    s_waitcnt vmcnt(11)
    ds_write_b128 v24, v[8:11]
    s_waitcnt vmcnt(9) lgkmcnt(0)
    s_barrier
    ''')
    AF,BF,D = 36,68,100
    for ks in range(4):
        for i in range(2):
            a(f'ds_read_b64_tr_b16 {vr(AF+4*ks+2*i,2)}, v25 offset:{ks*8192+i*1024}')
        for nt in range(2):
            a(f'ds_read_b128 {vr(BF+16*nt+4*ks,4)}, v{28+ks} offset:{4096*nt}')
    for ks in range(4):
        a(f's_waitcnt lgkmcnt({12-4*ks})')
        for nt in range(2):
            c = '0' if ks==0 else vr(D+4*nt,4)
            a(f'v_mfma_f32_16x16x32_bf16 {vr(D+4*nt,4)}, {vr(AF+4*ks,4)}, {vr(BF+16*nt+4*ks,4)}, {c}')
    X,Ee = 36,44
    for h in range(4):
        a(f'v_cvt_pk_bf16_f32 v{52+h}, v{D+2*h}, v{D+2*h+1}')
    for h in range(4):
        a(f'v_lshlrev_b32 v{X+2*h}, 16, v{52+h}\nv_and_b32 v{X+2*h+1}, 0xffff0000, v{52+h}')
    for i in range(8): a(f'v_mul_f32 v{Ee+i}, 0xbfb8aa3b, v{X+i}')
    for i in range(8): a(f'v_exp_f32 v{Ee+i}, v{Ee+i}')
    for i in range(8): a(f'v_add_f32 v{Ee+i}, 1.0, v{Ee+i}')
    for i in range(8): a(f'v_rcp_f32 v{Ee+i}, v{Ee+i}')
    for i in range(8): a(f'v_mul_f32 v{X+i}, v{X+i}, v{Ee+i}')
    for h in range(4):
        a(f'v_cvt_pk_bf16_f32 v{52+h}, v{X+2*h}, v{X+2*h+1}')
    a(f'''
    ds_write_b64 v32, v[52:53] offset:16384
    ds_write_b64 v32, v[54:55] offset:{16384+4096}
    s_waitcnt vmcnt(3) lgkmcnt(0)
    s_barrier
    ''')
    def a_reads(p, dst):
        for ks in range(4):
            for i in range(2):
                off = (1+p)*32768 + ks*8192 + i*1024
                reg = 25
                if off >= 65536: off -= 65536; reg = 26
                a(f'ds_read_b64_tr_b16 {vr(dst+4*ks+2*i,2)}, v{reg} offset:{off}')
    def mf(p, src):
        for ks in range(4):
            for nt in range(2):
                d = D+8*p+4*nt
                c = '0' if ks==0 else vr(d,4)
                a(f'v_mfma_f32_16x16x32_bf16 {vr(d,4)}, {vr(src+4*ks,4)}, {vr(BF+16*nt+4*ks,4)}, {c}')
    for ks in range(4):
        for nt in range(2):
            a(f'ds_read_b128 {vr(BF+16*nt+4*ks,4)}, v{28+ks} offset:{16384+4096*nt}')
    a_reads(0, AF)
    a_reads(1, AF+16)
    a('s_waitcnt lgkmcnt(8)')
    mf(0, AF)
    a_reads(2, AF)
    a('s_waitcnt lgkmcnt(8)')
    mf(1, AF+16)
    a('s_waitcnt lgkmcnt(0)')
    mf(2, AF)
    for p in range(3):
        for nt in range(2):
            d = D+8*p+4*nt; t = AF+16+4*p+2*nt
            a(f'v_cvt_pk_bf16_f32 v{t}, v{d}, v{d+1}\nv_cvt_pk_bf16_f32 v{t+1}, v{d+2}, v{d+3}')
            if p<2: a(f'ds_write_b64 v27, {vr(t,2)} offset:{16384*p+4096*nt}')
            else:   a(f'ds_write_b64 v32, {vr(t,2)} offset:{4096*nt}')
    a(f'''
    v_lshrrev_b32 v5, 3, v3
    s_mov_b32 s48, 1280000
    v_mul_lo_u32 v5, v5, s48
    v_and_b32 v6, 7, v3
    v_lshl_add_u32 v5, v6, 4, v5
    v_lshl_add_u32 v5, v33, 7, v5
    v_add_u32 v5, {T_DS}, v5                ; off_ds
    v_lshrrev_b32 v6, 2, v3
    s_mov_b32 s48, 2560000
    v_mul_lo_u32 v6, v6, s48
    v_and_b32 v34, 3, v3
    v_lshl_add_u32 v6, v34, 4, v6
    v_lshl_add_u32 v6, v33, 8, v6           ; off_dv
    s_movk_i32 s48, {N}
    v_cmp_gt_u32 vcc, s48, v33
    s_waitcnt lgkmcnt(0)
    s_barrier
    s_and_saveexec_b64 s[50:51], vcc
    s_cbranch_execz L_k1_end
    ds_read_b128 v[36:39], v7
    ds_read_b128 v[40:43], v7 offset:16384
    ds_read_b128 v[44:47], v24
    s_waitcnt lgkmcnt(2)
    buffer_store_dwordx4 v[36:39], v5, s[{WS}:{WS+3}], 0 offen
    s_waitcnt vmcnt(1) lgkmcnt(0)
    ''')
    for p in range(4):
        o = 48+4*p; t=64
        a(f'''
        v_lshlrev_b32 v{t}, 16, v{40+p}
        v_and_b32 v{t+1}, 0xffff0000, v{40+p}
        v_lshlrev_b32 v{t+2}, 16, v{44+p}
        v_and_b32 v{t+3}, 0xffff0000, v{44+p}
        ''')
        for k in range(3):
            a(f'v_lshlrev_b32 v{t+4+2*k}, 16, v{12+4*k+p}\nv_and_b32 v{t+5+2*k}, 0xffff0000, v{12+4*k+p}')
        for k in range(3):
            a(f'v_mul_f32 v{t+4+2*k}, v{t}, v{t+4+2*k}\nv_mul_f32 v{t+5+2*k}, v{t+1}, v{t+5+2*k}')
        a(f'''
        v_cvt_pk_bf16_f32 v{o}, v{t+2}, v{t+4}
        v_cvt_pk_bf16_f32 v{o+1}, v{t+6}, v{t+8}
        v_cvt_pk_bf16_f32 v{o+2}, v{t+3}, v{t+5}
        v_cvt_pk_bf16_f32 v{o+3}, v{t+7}, v{t+9}
        buffer_store_dwordx4 {vr(o,4)}, v6, s[{WS}:{WS+3}], 0 offen offset:{64*p}
        ''')
    a('s_endpgm')

def edge_role(a):
    POS,SRC,DST,RC,SG = 24,28,32,36,40
    CNT = 65536
    a(f'''
    s_sub_u32 s23, s2, {NNODEWG}            ; ew
    s_mul_i32 s48, s23, {EPW*4}
    v_lshlrev_b32 v2, 4, v0
    v_add_u32 v3, s48, v2
    s_lshl_b32 s49, s22, 12
    v_lshlrev_b32 v12, 4, v1
    v_add_u32 v12, s49, v12                 ; w*4096 + l*16
    s_mov_b32 m0, s49
    s_mul_i32 s50, s23, {REC_STRIDE}
    s_add_u32 s50, s50, {REC}
    s_movk_i32 s51, {EPW//4}
    v_cmp_gt_u32 s[44:45], s51, v0
    v_lshlrev_b32 v13, 2, v1
    v_add_u32 v13, {CNT}, v13               ; &CNT[l]
    v_mov_b32 v14, 0
    ds_write_b32 v13, v14
    s_waitcnt lgkmcnt(0)
    ''')
    srd(a,POS,6,60000); srd(a,SRC,8,E*4); srd(a,DST,10,E*4); srd(a,RC,20,REC_STRIDE,'s50'); srd(a,SG,20,NB*NEW*4,SEG)
    a(f'''
    buffer_load_dwordx4 v[4:7], v3, s[{SRC}:{SRC+3}], 0 offen
    buffer_load_dwordx4 v[8:11], v3, s[{DST}:{DST+3}], 0 offen
    buffer_load_dwordx4 v12, s[{POS}:{POS+3}], 0 offen lds
    buffer_load_dwordx4 v12, s[{POS}:{POS+3}], 0 offen offset:1024 lds
    buffer_load_dwordx4 v12, s[{POS}:{POS+3}], 0 offen offset:2048 lds
    buffer_load_dwordx4 v12, s[{POS}:{POS+3}], 0 offen offset:3072 lds
    s_mov_b32 s52, 0x409c0000
    s_mov_b32 s53, 0x07060100
    s_mov_b32 s54, 0x07060302
    s_movk_i32 s55, {-BN}
    v_mov_b32 v15, 1
    s_waitcnt vmcnt(4)
    ''')
    AS,AD,BK,W2 = 16,20,24,28
    for i in range(4):
        a(f'''
        v_mul_u32_u24 v{AS+i}, 6, v{4+i}
        v_mul_u32_u24 v{AD+i}, 6, v{8+i}
        v_mul_u32_u24 v{BK+i}, {BMAGIC}, v{8+i}
        v_lshrrev_b32 v{BK+i}, {BSHIFT}, v{BK+i}
        v_mad_i32_i24 v{W2+i}, v{BK+i}, s55, v{8+i}
        v_lshl_or_b32 v{W2+i}, v{4+i}, 8, v{W2+i}
        v_lshlrev_b32 v{BK+i}, 2, v{BK+i}
        ''')
    PS,PD = 32,44
    if ZERO_D16:
        for i in range(24): a(f'v_mov_b32 v{PS+i}, 0')
    a('s_waitcnt vmcnt(0)\ns_barrier')
    for i in range(4):
        for k in range(3):
            a(f'ds_read_u16_d16_hi v{PS+3*i+k}, v{AS+i} offset:{2*k}')
            a(f'ds_read_u16_d16_hi v{PD+3*i+k}, v{AD+i} offset:{2*k}')
    W0,W1,RK = 56,60,64
    T=68
    for h in range(2):
        R = PS+6*h; Q = PD+6*h
        a(f's_waitcnt lgkmcnt({12 if h==0 else 2})')
        for k in range(6): a(f'v_sub_f32 v{R+k}, v{R+k}, v{Q+k}')
        def rnd6(X):
            for k in range(3): a(f'v_cvt_pk_bf16_f32 v{T+k}, v{X+2*k}, v{X+2*k+1}')
            for k in range(3): a(f'v_lshlrev_b32 v{X+2*k}, 16, v{T+k}\nv_and_b32 v{X+2*k+1}, 0xffff0000, v{T+k}')
        rnd6(R)
        for k in range(6): a(f'v_mul_f32 v{Q+k}, v{R+k}, v{R+k}')
        rnd6(Q)
        a(f'''
        v_add_f32 v{Q}, v{Q}, v{Q+1}
        v_add_f32 v{Q+3}, v{Q+3}, v{Q+4}
        v_add_f32 v{Q}, v{Q}, v{Q+2}
        v_add_f32 v{Q+1}, v{Q+3}, v{Q+5}
        ''')
        def rnd2():
            a(f'v_cvt_pk_bf16_f32 v{T}, v{Q}, v{Q+1}\nv_lshlrev_b32 v{Q}, 16, v{T}\nv_and_b32 v{Q+1}, 0xffff0000, v{T}')
        rnd2()
        a(f'v_add_f32 v{Q}, 0x322bcc77, v{Q}\nv_add_f32 v{Q+1}, 0x322bcc77, v{Q+1}')
        rnd2()
        a(f'v_sqrt_f32 v{Q}, v{Q}\nv_sqrt_f32 v{Q+1}, v{Q+1}')
        rnd2()
        a(f'v_rcp_f32 v{Q+2}, v{Q}\nv_rcp_f32 v{Q+3}, v{Q+1}')
        for e in range(2):
            i=2*h+e
            a(f'v_cmp_ge_u32 s[{56+2*i}:{57+2*i}], s52, v{Q+e}')
            a(f'v_subrev_u32 v{Q+4+e}, 0x38d10000, v{Q+e}\nv_lshlrev_b32 v{Q+4+e}, 5, v{Q+4+e}')
        for k in range(6): a(f'v_mul_f32 v{R+k}, v{R+k}, v{Q+2+k//3}')
        a(f'''
        v_cvt_pk_bf16_f32 v{W0+2*h}, v{R}, v{R+1}
        v_cvt_pk_bf16_f32 v{W0+2*h+1}, v{R+3}, v{R+4}
        v_cvt_pk_bf16_f32 v{T}, v{R+2}, v{R+5}
        v_perm_b32 v{W1+2*h}, v{Q+4}, v{T}, s53
        v_perm_b32 v{W1+2*h+1}, v{Q+5}, v{T}, s54
        ''')
        for e in range(2):
            i=2*h+e
            a(f'''
            s_and_b64 s[{56+2*i}:{57+2*i}], s[{56+2*i}:{57+2*i}], s[44:45]
            s_mov_b64 exec, s[{56+2*i}:{57+2*i}]
            v_add_u32 v{T+1+e}, {CNT}, v{BK+i}
            ds_add_rtn_u32 v{RK+i}, v{T+1+e}, v15
            ''')
        a('s_mov_b64 exec, -1')
    a(f'''
    s_waitcnt lgkmcnt(0)
    s_barrier
    ds_read_b32 v14, v13
    s_waitcnt lgkmcnt(0)
    v_mov_b32 v12, v14
    ''')
    scan64(a,12)
    a(f'''
    v_readlane_b32 s48, v12, 63             ; total
    v_sub_u32 v12, v12, v14                 ; exclusive
    ''')
    for i in range(4): a(f'ds_bpermute_b32 v{AS+i}, v{BK+i}, v12')
    a(f'''
    s_mul_i32 s48, s48, 12
    s_add_u32 s48, s48, 15
    s_and_b32 s{RC+2}, s48, 0xfffffff0
    s_cmp_lg_u32 s22, 0
    s_cbranch_scc1 L_k1_noseg
    v_lshl_or_b32 v14, v14, 16, v12
    v_mul_u32_u24 v3, {NEW*4}, v1
    s_lshl_b32 s49, s23, 2
    v_add_u32 v3, s49, v3
    buffer_store_dword v14, v3, s[{SG}:{SG+3}], 0 offen
    L_k1_noseg:
    s_waitcnt lgkmcnt(0)
    ''')
    for i in range(4):
        a(f'''
        v_add_u32 v{AS+i}, v{AS+i}, v{RK+i}
        v_mul_u32_u24 v{AS+i}, 12, v{AS+i}
        ''')
    for i in range(4):
        a(f'''
        s_mov_b64 exec, s[{56+2*i}:{57+2*i}]
        ds_write2_b32 v{AS+i}, v{W0+i}, v{W1+i} offset0:0 offset1:1
        ds_write_b32 v{AS+i}, v{W2+i} offset:8
        ''')
    a(f'''
    s_mov_b64 exec, -1
    s_waitcnt lgkmcnt(0)
    s_barrier
    ds_read_b128 v[4:7], v2
    ds_read_b128 v[8:11], v2 offset:16384
    ds_read_b128 v[16:19], v2 offset:32768
    v_add_u32 v12, 0x4000, v2
    v_add_u32 v13, 0x8000, v2
    s_lshl_b32 s49, s22, 10
    s_add_u32 s49, s49, 0x8000
    s_waitcnt lgkmcnt(2)
    buffer_store_dwordx4 v[4:7], v2, s[{RC}:{RC+3}], 0 offen
    s_waitcnt lgkmcnt(1)
    buffer_store_dwordx4 v[8:11], v12, s[{RC}:{RC+3}], 0 offen
    s_cmp_ge_u32 s49, s{RC+2}
    s_cbranch_scc1 L_k1_end
    s_waitcnt lgkmcnt(0)
    buffer_store_dwordx4 v[16:19], v13, s[{RC}:{RC+3}], 0 offen
    s_endpgm
    ''')

def misc_role(a):
    FR,WR,OUT = 24,28,32
    a(f'''
    s_sub_u32 s23, s2, {NNODEWG+NEW}        ; m
    v_and_b32 v2, 7, v0
    v_lshlrev_b32 v2, 2, v2
    v_lshrrev_b32 v3, 3, v0
    s_lshl_b32 s48, s23, 7
    v_add_u32 v3, s48, v3                   ; row
    v_add_u32 v4, 0x38d1, v3
    v_lshlrev_b32 v4, 16, v4                ; d
    s_waitcnt lgkmcnt(0)
    ''')
    srd(a,FR,12,32); srd(a,WR,18,16*768); srd(a,OUT,20,65536+16384,RBF)
    a(f'''
    buffer_load_dword v5, v2, s[{FR}:{FR+3}], 0 offen
    s_lshr_b32 s40, s22, 1                  ; op
    v_and_b32 v20, 15, v1                   ; c16
    v_lshrrev_b32 v21, 4, v1                ; kb
    s_cmp_ge_u32 s40, 4
    s_cbranch_scc1 L_k1_fds
    v_and_b32 v22, 3, v20
    v_lshlrev_b32 v22, 3, v22
    v_lshrrev_b32 v23, 2, v20
    v_lshl_add_u32 v22, v23, 1, v22         ; 8(c&3) + 2(c>>2)
    s_lshl_b32 s41, s23, 5                  ; 32 sigma
    s_and_b32 s42, s40, 1
    s_add_u32 s41, s41, s42
    s_lshr_b32 s42, s40, 1
    s_lshl_b32 s42, s42, 7
    s_add_u32 s41, s41, s42
    s_add_u32 s41, s41, 128
    s_branch L_k1_fj
    L_k1_fds:
    v_and_b32 v22, 7, v20
    v_lshlrev_b32 v22, 3, v22
    v_lshrrev_b32 v23, 3, v20
    v_lshl_add_u32 v22, v23, 2, v22         ; 8p + 4b2
    s_and_b32 s41, s23, 1
    s_lshl_b32 s41, s41, 6
    s_add_u32 s41, s41, s40
    s_sub_u32 s41, s41, 4
    L_k1_fj:
    v_add_lshl_u32 v22, v22, s41, 1         ; col*2
    s_and_b32 s42, s22, 1
    s_mul_i32 s42, s42, 1536
    v_mul_u32_u24 v23, 0xc00, v21           ; 4kb*768
    v_add3_u32 v22, v22, v23, s42
    buffer_load_ushort v24, v22, s[{WR}:{WR+3}], 0 offen
    buffer_load_ushort v25, v22, s[{WR}:{WR+3}], 0 offen offset:768
    ; fcut
    v_mul_f32 v6, 0x40490fdb, v4
    v_cvt_pk_bf16_f32 v6, v6, v6
    v_lshlrev_b32 v6, 16, v6
    v_mul_f32 v6, 0x3e4ccccd, v6
    v_cvt_pk_bf16_f32 v6, v6, v6
    v_lshlrev_b32 v6, 16, v6
    v_mul_f32 v6, 0.15915494, v6
    v_cos_f32 v6, v6
    v_cvt_pk_bf16_f32 v6, v6, v6
    v_lshlrev_b32 v6, 16, v6
    v_add_f32 v6, 1.0, v6
    v_cvt_pk_bf16_f32 v6, v6, v6
    v_lshlrev_b32 v6, 16, v6
    v_mul_f32 v6, 0.5, v6
    v_cmp_ne_u32 vcc, 0, v3
    v_cndmask_b32 v6, 0, v6, vcc
    v_rcp_f32 v7, v4
    s_waitcnt vmcnt(2)
    v_lshlrev_b32 v8, 16, v5
    v_and_b32 v9, 0xffff0000, v5
    v_mul_f32 v8, v8, v4
    v_mul_f32 v9, v9, v4
    v_cvt_pk_bf16_f32 v10, v8, v9
    v_lshlrev_b32 v8, 16, v10
    v_and_b32 v9, 0xffff0000, v10
    v_mul_f32 v8, 0.15915494, v8
    v_mul_f32 v9, 0.15915494, v9
    v_rndne_f32 v10, v8
    v_rndne_f32 v11, v9
    v_sub_f32 v8, v8, v10
    v_sub_f32 v9, v9, v11
    v_sin_f32 v8, v8
    v_sin_f32 v9, v9
    v_cvt_pk_bf16_f32 v10, v8, v9
    v_lshlrev_b32 v8, 16, v10
    v_and_b32 v9, 0xffff0000, v10
    v_mul_f32 v8, v8, v7
    v_mul_f32 v9, v9, v7
    v_cvt_pk_bf16_f32 v10, v8, v9
    v_lshlrev_b32 v8, 16, v10
    v_and_b32 v9, 0xffff0000, v10
    v_mul_f32 v8, v8, v6
    v_mul_f32 v9, v9, v6
    v_cvt_pk_bf16_f32 v10, v8, v9
    s_lshl_b32 s48, s23, 12
    v_lshlrev_b32 v11, 2, v0
    v_add_u32 v11, s48, v11
    buffer_store_dword v10, v11, s[{OUT}:{OUT+3}], 0 offen
    s_cmp_ge_u32 s23, 4
    s_cbranch_scc1 L_k1_end
    s_lshr_b32 s42, s22, 2
    s_lshl_b32 s42, s42, 10
    s_and_b32 s43, s22, 3
    s_lshl_b32 s43, s43, 2
    s_add_u32 s42, s42, s43
    s_add_u32 s42, s42, s48
    s_add_u32 s42, s42, 0x10000
    v_lshlrev_b32 v11, 4, v1
    v_add_u32 v11, s42, v11
    s_waitcnt vmcnt(1)
    v_lshl_or_b32 v24, v25, 16, v24
    buffer_store_dword v24, v11, s[{OUT}:{OUT+3}], 0 offen
    ''')
```

```python
from asmlib import *
from consts import *
from k1 import srd, scan64

CAP=368
L_BF=65536; L_RD=69632; L_SM=L_RD+CAP*128
L_CNT=L_SM; L_H=L_SM+640; L_GST=L_H+512; L_ZERO=L_GST+256; L_MORE=L_ZERO+64; L_BASE=L_MORE+64
assert L_BASE+272<=L_SM+2048 and L_BASE%16==0
L_SRC=L_SM+2048; L_ORD=L_SRC+CAP*64; L_NB=L_ORD+1024; L_END=L_NB+768
assert L_SRC-L_RD==49152 and L_NB-L_SRC==24576
LDS2=L_END
OOB=0x40000000
LUT_D=[11,7,14,4]; LUT_P=[8,12,13,9]
LUT=sum(w<<(4*i) for i,w in enumerate(LUT_D+LUT_P))
EXD=sum(1<<w for w in LUT_D); EXP=sum(1<<w for w in LUT_P)
NLD=6

DV,DS,SV,OUT,WS2,PT = 20,24,28,32,36,40
def S4(x): return f's[{x}:{x+3}]'
BF=4; G=20; GS=36; W=44; ACE=60; ACO=64; ACS=68; AA=72; RR=74; SRC=76; SRC2=80; DI=82; DIA=83
AD=84; AD2=88; SH=90; TP=98; aSRC=102; aDI=103; aR=104; incR=105; aSRC2=106; c16o=107; p16o=108; kbo=109
ORD=110; RESV=114; RESS=(126,2); odv=0; ods=1

def gen_k2(a, EXACT=True, NT=' nt', PREFETCH=True):
    a(f'''
    .globl main_kernel
    .p2align 8
    .type main_kernel,@function
    main_kernel:
    s_cmp_ge_u32 s2, 256
    s_cbranch_scc1 L_end
    s_load_dwordx2 s[4:5], s[0:1], 0
    s_load_dwordx2 s[6:7], s[0:1], 64
    s_load_dwordx2 s[8:9], s[0:1], 80
    v_lshrrev_b32 v2, 6, v0
    v_readfirstlane_b32 s10, v2             ; wave
    s_bfe_u32 s11, s2, 0x20001
    s_lshr_b32 s13, s2, 3                   ; j
    s_and_b32 s12, s2, 1
    s_lshl1_add_u32 s12, s13, s12
    s_mov_b32 s14, 0                        ; lo
    s_mov_b32 s15, {NLD}                    ; win
    s_mul_i32 s65, s11, 2560000
    s_and_b32 s66, s11, 1
    s_mul_i32 s66, s66, 1280000
    s_add_u32 s66, s66, {T_DS}
    s_mul_i32 s67, s11, 10240000
    s_add_u32 s67, s67, {PART}
    s_waitcnt lgkmcnt(0)
    ''')
    srd(a,WS2,8,PART-RBF,RBF); srd(a,DV,8,2560000,'s65'); srd(a,DS,8,1280000,'s66'); srd(a,SV,4,10240000); srd(a,OUT,6,10240000); srd(a,PT,8,10240000,'s67')
    a(f'''
    L_round:
    v_mbcnt_lo_u32_b32 v1, -1, 0
    v_mbcnt_hi_u32_b32 v1, -1, v1           ; lane
    s_lshl_b32 s65, s10, 6
    v_add_u32 v0, s65, v1                   ; tid
    v_mul_u32_u24 v45, 683, v0
    v_lshrrev_b32 v45, 13, v45              ; wseg
    v_mul_u32_u24 v46, 12, v45
    v_sub_u32 v46, v0, v46                  ; u
    s_mul_i32 s65, s12, {NEW*4}
    s_add_u32 s65, s65, {SEG-RBF}
    v_lshl_add_u32 v48, v45, 2, s65
    v_mov_b32 v47, 0
    v_lshlrev_b32 v49, 4, v1
    s_cmp_ge_u32 s10, 4
    s_cbranch_scc1 L_nobf
    s_lshl_b32 s66, s10, 10
    s_add_u32 s66, s66, {L_BF}
    s_mov_b32 m0, s66
    s_lshl_b32 s67, s11, 12
    s_add_u32 s67, s67, s66
    v_add_u32 v50, s67, v49
    buffer_load_dwordx4 v50, {S4(WS2)}, 0 offen lds
    L_nobf:
    s_cmp_eq_u32 s10, 15
    s_cbranch_scc1 L_noseg
    buffer_load_dword v47, v48, {S4(WS2)}, 0 offen
    L_noseg:
    s_lshl_b32 s65, s10, 12
    v_add_u32 v50, s65, v49
    s_mov_b32 m0, s65
    s_nop 0
    buffer_load_dwordx4 v50, {S4(WS2)}, 0 offen lds
    buffer_load_dwordx4 v50, {S4(WS2)}, 0 offen offset:1024 lds
    buffer_load_dwordx4 v50, {S4(WS2)}, 0 offen offset:2048 lds
    buffer_load_dwordx4 v50, {S4(WS2)}, 0 offen offset:3072 lds
    v_mov_b32 v52, 0
    v_mov_b32 v53, 0
    v_mov_b32 v54, 0
    v_mov_b32 v55, 0
    v_mov_b32 v56, {OOB}
    v_mov_b32 v57, {OOB}
    v_mov_b32 v58, {OOB}
    v_mov_b32 v59, {OOB}
    v_lshlrev_b32 v50, 4, v0
    v_add_u32 v50, {L_RD}, v50
    ds_write_b128 v50, v[52:55]
    ds_write_b128 v50, v[52:55] offset:16384
    ds_write_b128 v50, v[52:55] offset:32768
    ds_write_b128 v50, v[56:59] offset:49152
    v_lshlrev_b32 v50, 3, v0
    v_add_u32 v50, {L_SRC+16384}, v50
    ds_write_b64 v50, v[56:57]
    v_mul_u32_u24 v48, {REC_STRIDE}, v45
    s_mul_i32 s65, s14, 12
    s_add_u32 s65, s65, {REC-RBF}
    v_add_u32 v48, s65, v48
    s_waitcnt vmcnt(4)
    ''')
    a(f'''
    v_and_b32 v49, 0xffff, v47
    v_add_u32 v49, v49, v46
    v_mad_u32_u24 v48, v49, 12, v48
    v_lshrrev_b32 v47, 16, v47
    v_sub_u32 v47, v47, v46                 ; cnt - u
    ''')
    for j in range(NLD):
        m=44+2*j
        a(f's_add_u32 s65, s14, {12*j}\nv_cmp_lt_i32 s[{m}:{m+1}], s65, v47')
    a(f'''
    s_cmp_eq_u32 s15, {NLD}
    s_cbranch_scc1 L_fullwin
    ''')
    for j in range(1,NLD): a(f's_mov_b64 s[{44+2*j}:{45+2*j}], 0')
    a('L_fullwin:')
    for j in range(NLD):
        m=44+2*j
        a(f'''
        s_mov_b64 exec, s[{m}:{m+1}]
        s_cbranch_execz L_ld_done
        buffer_load_dwordx3 {vr(20+4*j,3)}, v48, {S4(WS2)}, 0 offen offset:{144*j}
        ''')
    a(f'''
    L_ld_done:
    s_mov_b64 exec, -1
    ''')
    if PREFETCH:
        a(f'''
        s_cmp_ge_u32 s10, 10
        s_cbranch_scc1 L_pf2
        s_mul_i32 s65, s13, {625*128}
        v_lshl_add_u32 v50, v0, 7, s65
        buffer_load_dword v44, v50, {S4(DV)}, 0 offen
        s_branch L_pf3
        L_pf2:
        s_mul_i32 s65, s13, {313*128}
        s_sub_u32 s65, s65, {640*128}
        v_lshl_add_u32 v50, v0, 7, s65
        buffer_load_dword v44, v50, {S4(DS)}, 0 offen
        L_pf3:
        ''')
    a(f'''
    s_mul_i32 s65, s15, 12
    s_add_u32 s65, s65, s14
    v_cmp_lt_i32 vcc, s65, v47
    v_mov_b32 v56, 1
    v_mov_b32 v57, {L_MORE}
    s_waitcnt lgkmcnt(0)
    s_barrier
    s_mov_b64 exec, vcc
    ds_write_b32 v57, v56
    s_waitcnt vmcnt({1 if PREFETCH else 0})
    ''')
    for j in range(NLD):
        m=44+2*j; r=20+4*j
        a(f'''
        s_mov_b64 exec, s[{m}:{m+1}]
        v_and_b32 v{50+j}, 0xff, v{r+2}
        v_lshlrev_b32 v{50+j}, 2, v{50+j}
        v_add_u32 v{50+j}, {L_CNT}, v{50+j}
        ds_add_rtn_u32 v{r+3}, v{50+j}, v56
        ''')
    a(f'''
    s_mov_b64 exec, -1
    s_waitcnt lgkmcnt(0)
    s_barrier
    s_cmp_lg_u32 s10, 0
    s_cbranch_scc1 L_np_done
    v_lshlrev_b32 v80, 2, v1
    v_add_u32 v81, {L_CNT}, v80
    ds_read_b32 v60, v81
    ds_read_b32 v61, v81 offset:256
    ds_read_b32 v62, v81 offset:512
    s_mul_i32 s72, s12, {BN}
    s_sub_u32 s65, {N}, s72
    s_min_u32 s65, s65, {BN}
    s_lshr_b32 s73, s11, 1
    v_xor_b32 v69, s73, v1
    v_and_b32 v69, 1, v69                   ; set: 0 = D, 1 = P
    v_lshlrev_b32 v70, 8, v69
    v_add_u32 v70, {L_H}, v70
    v_cmp_gt_u32 s[66:67], s65, v1
    v_add_u32 v82, 64, v1
    v_cmp_gt_u32 s[68:69], s65, v82
    v_add_u32 v82, 0x80, v1
    v_cmp_gt_u32 s[70:71], s65, v82
    s_waitcnt lgkmcnt(0)
    ''')
    for k in range(3):
        a(f'''
        v_add_u32 v{60+k}, 3, v{60+k}
        v_lshrrev_b32 v{60+k}, 2, v{60+k}
        v_min_u32 v{63+k}, 63, v{60+k}
        v_sub_u32 v{63+k}, 63, v{63+k}
        v_lshlrev_b32 v{63+k}, 2, v{63+k}
        v_add_u32 v{82+k}, v70, v{63+k}
        ''')
    for k in range(3):
        a(f's_mov_b64 exec, s[{66+2*k}:{67+2*k}]\nds_add_rtn_u32 v{66+k}, v{82+k}, v56')
    a(f'''
    s_mov_b64 exec, -1
    v_add_u32 v81, {L_H}, v80
    ds_read2_b32 v[72:73], v81 offset0:0 offset1:64
    v_lshlrev_b32 v85, 4, v69               ; 16*set
    v_mul_u32_u24 v86, 15, v69              ; 15*set
    s_mov_b32 s73, {LUT}
    s_waitcnt lgkmcnt(0)
    v_lshl_or_b32 v71, v73, 16, v72
    v_mov_b32 v72, v71
    ''')
    scan64(a,72)
    a('v_sub_u32 v72, v72, v71')
    for k in range(3): a(f'ds_bpermute_b32 v{82+k}, v{63+k}, v72')
    a(f'''
    v_add_u32 v87, s72, v1
    v_lshlrev_b32 v87, 10, v87              ; n*1024 for k=0
    s_waitcnt lgkmcnt(0)
    ''')
    for k in range(3):
        a(f'''
        v_lshrrev_b32 v{82+k}, v85, v{82+k}
        v_and_b32 v{82+k}, 0xffff, v{82+k}
        v_add_u32 v{66+k}, v{66+k}, v{82+k}     ; pos
        v_and_b32 v{77+k}, 3, v{66+k}
        v_lshlrev_b32 v{77+k}, 4, v{77+k}       ; 16q
        v_lshrrev_b32 v{66+k}, 2, v{66+k}       ; gi
        v_and_b32 v88, 3, v{66+k}
        v_lshl_add_u32 v88, v88, 2, v85
        v_bfe_u32 v88, s73, v88, 4
        v_xor_b32 v89, v86, v{66+k}
        v_cmp_gt_u32 vcc, 16, v{66+k}
        v_cndmask_b32 v88, v88, v89, vcc        ; wave
        v_lshrrev_b32 v89, 4, v{66+k}
        v_lshl_add_u32 v89, v69, 1, v89         ; idx
        v_lshlrev_b32 v89, 2, v89
        v_lshl_add_u32 v{74+k}, v88, 4, v89     ; p*4
        v_lshl_add_u32 v89, v88, 6, v89
        v_add_u32 v89, v89, v{77+k}
        v_add_u32 v89, {L_ORD}, v89
        v_add_u32 v88, {L_GST}, v{74+k}
        s_mov_b64 exec, s[{66+2*k}:{67+2*k}]
        ds_write_b32 v89, v87
        ds_max_u32 v88, v{60+k}
        s_mov_b64 exec, -1
        v_add_u32 v87, 0x10000, v87
        ''')
    a(f'''
    v_add_u32 v81, {L_GST}, v80
    ds_read_b32 v71, v81
    s_waitcnt lgkmcnt(0)
    v_mov_b32 v72, v71
    ''')
    scan64(a,72)
    a(f'''
    ds_write_b32 v81, v72 offset:{L_BASE+4-L_GST}
    v_sub_u32 v72, v72, v71
    ''')
    for k in range(3): a(f'ds_bpermute_b32 v{82+k}, v{74+k}, v72')
    a(f'v_add_u32 v81, {L_NB}, v80\ns_waitcnt lgkmcnt(0)')
    for k in range(3):
        a(f'''
        v_lshl_add_u32 v{82+k}, v{82+k}, 6, v{77+k}
        v_add_u32 v{82+k}, {L_SRC}, v{82+k}
        ds_write_b32 v81, v{82+k} offset:{256*k}
        ''')
    a(f'''
    s_waitcnt lgkmcnt(0)
    L_np_done:
    s_barrier
    ''')
    for j in range(NLD):
        a(f'ds_read_b32 v{60+j}, v{50+j} offset:{L_NB-L_CNT}')
    a(f'''
    s_lshl_b32 s65, s10, 4
    s_add_u32 s65, s65, {L_BASE}
    v_mov_b32 v66, s65
    ds_read_b128 v[68:71], v66
    ds_read_b32 v72, v66 offset:16
    ds_read_b32 v73, v57 offset:{L_BASE+256-L_MORE}
    ds_read_b32 v74, v57
    v_lshrrev_b32 v75, 4, v1                ; q
    s_lshl_b32 s65, s10, 6
    s_add_u32 s65, s65, {L_ORD}
    v_lshl_add_u32 v66, v75, 4, s65
    ds_read_b128 {vr(ORD,4)}, v66
    s_mov_b32 s66, {(L_RD-2*L_SRC)&0xffffffff}
    s_waitcnt lgkmcnt(1)
    v_readfirstlane_b32 s65, v73
    v_readfirstlane_b32 s17, v74
    v_readfirstlane_b32 s56, v68
    v_readfirstlane_b32 s57, v69
    v_readfirstlane_b32 s58, v70
    v_readfirstlane_b32 s59, v71
    v_readfirstlane_b32 s60, v72
    s_cmp_le_u32 s65, {CAP}
    s_cbranch_scc1 L_fits
    s_cmp_eq_u32 s15, 1
    s_cbranch_scc1 L_end
    s_mov_b32 s15, 1
    s_waitcnt vmcnt(0) lgkmcnt(0)
    s_barrier
    s_branch L_round
    L_fits:
    s_min_u32 s57, s57, s65
    s_min_u32 s58, s58, s65
    s_min_u32 s59, s59, s65
    s_min_u32 s60, s60, s65
    ''')
    for j in range(NLD):
        m=44+2*j; r=20+4*j
        a(f'''
        s_mov_b64 exec, s[{m}:{m+1}]
        s_cbranch_execz L_pl_done
        v_and_b32 v66, -4, v{r+3}
        v_mad_u32_u24 v66, v66, 3, v{r+3}
        v_lshl_add_u32 v66, v66, 2, v{60+j}
        v_lshl_add_u32 v67, v66, 1, s66
        v_and_b32 v{r+2}, 0xffffff00, v{r+2}
        ds_write_b64 v67, {vr(r,2)}
        ds_write_b32 v66, v{r+2}
        ''')
    a(f'''
    L_pl_done:
    s_mov_b64 exec, -1
    v_and_b32 v76, 15, v1                   ; c16
    v_lshlrev_b32 v{c16o}, 4, v76
    v_and_b32 v77, 7, v1
    v_lshlrev_b32 v{p16o}, 4, v77
    v_lshlrev_b32 v{kbo}, 3, v75
    v_bfe_u32 v78, v1, 3, 1                 ; b2
    s_lshl_b32 s65, s56, 6
    s_add_u32 s65, s65, {L_SRC}
    v_lshl_add_u32 v{aSRC}, v75, 4, s65
    v_lshl_add_u32 v{aSRC2}, v78, 2, v{aSRC}
    s_lshl_b32 s65, s56, 7
    s_add_u32 s65, s65, {L_RD}
    v_lshl_add_u32 v{aDI}, v76, 3, s65
    v_and_b32 v79, 3, v1
    v_cmp_eq_u32 vcc, v79, v75
    v_lshrrev_b32 v80, 2, v1                ; 4q + r
    v_lshl_add_u32 v80, v80, 3, s65
    v_mov_b32 v81, {L_ZERO}
    v_cndmask_b32 v{aR}, v81, v80, vcc
    v_mov_b32 v81, 0x80
    v_cndmask_b32 v{incR}, 0, v81, vcc
    v_lshlrev_b32 v80, 4, v1
    v_add_u32 v80, {L_BF}, v80
    ds_read_b128 {vr(BF,4)}, v80
    ds_read_b128 {vr(BF+4,4)}, v80 offset:1024
    ds_read_b128 {vr(BF+8,4)}, v80 offset:2048
    ds_read_b128 {vr(BF+12,4)}, v80 offset:3072
    v_lshrrev_b32 v80, 2, v76
    v_lshlrev_b32 v80, 2, v80
    v_lshl_add_u32 v80, v79, 4, v80
    s_lshl_b32 s65, s11, 6
    s_add_u32 s65, s65, 0x100
    v_add_u32 v{odv}, s65, v80
    s_and_b32 s65, s11, 1
    s_lshl_b32 s65, s65, 7
    v_lshl_add_u32 v80, v78, 3, v{p16o}
    v_add_u32 v{ods}, s65, v80
    s_lshr_b32 s65, {EXD}, s10
    s_and_b32 s65, s65, 1
    s_lshl_b32 s65, s65, 1
    s_lshr_b32 s66, {EXP}, s10
    s_and_b32 s66, s66, 1
    s_lshl_b32 s66, s66, 3
    s_or_b32 s63, s65, s66
    s_or_b32 s63, s63, 5
    s_mov_b32 s61, s58                      ; BP
    s_mov_b32 s62, 0
    s_mov_b32 s64, 0
    s_mov_b32 s74, s56                      ; B0
    s_waitcnt lgkmcnt(4)
    ''')
    for g in range(4):
        if g&1: a(f's_bitcmp0_b32 s63, {g}\ns_cbranch_scc1 L_nores{g}')
        a(f'v_add_u32 v80, v{ORD+g}, v{odv}')
        for k in range(3): a(f'buffer_load_dword v{RESV+3*g+k}, v80, {S4(SV)}, 0 offen offset:{256*k}{NT}')
        if g<2:
            a(f'v_add_u32 v81, v{ORD+g}, v{ods}\nbuffer_load_dwordx2 {vr(RESS[g],2)}, v81, {S4(SV)}, 0 offen{NT}')
        if g&1: a(f'L_nores{g}:')
    a(f'''
    s_waitcnt lgkmcnt(0)
    s_barrier
    s_cmp_ge_u32 s56, s60
    s_cbranch_scc1 L_group
    ds_read_b128 {vr(SRC,4)}, v{aSRC}
    ds_read2_b32 {vr(SRC2,2)}, v{aSRC2} offset0:0 offset1:2
    ds_read_u16 v{DI}, v{aDI} offset:6
    s_waitcnt lgkmcnt(0)
    ''')
    for r in range(4): a(f'v_add_u32 v{AD+r}, v{SRC+r}, v{c16o}')
    for i in range(2): a(f'v_lshrrev_b32 v{AD2+i}, 1, v{SRC2+i}\nv_add_u32 v{AD2+i}, v{AD2+i}, v{p16o}')
    a(f'v_add_u32 v{DIA}, v{DI}, v{kbo}')
    for r in range(4): a(f'buffer_load_dwordx4 {vr(G+4*r,4)}, v{AD+r}, {S4(DV)}, 0 offen')
    a(f'''
    s_cmp_ge_u32 s56, s61
    s_cbranch_scc1 L_fill2
    buffer_load_dwordx4 {vr(GS,4)}, v{AD2}, {S4(DS)}, 0 offen
    buffer_load_dwordx4 {vr(GS+4,4)}, v{AD2+1}, {S4(DS)}, 0 offen
    L_fill2:
    ds_read_b64 {vr(AA,2)}, v{DIA}
    ds_read_b128 {vr(SRC,4)}, v{aSRC} offset:64
    ds_read2_b32 {vr(SRC2,2)}, v{aSRC2} offset0:16 offset1:18
    ds_read_u16 v{DI}, v{aDI} offset:{128+6}
    L_group:
    s_bitcmp0_b32 s63, s62
    s_cbranch_scc1 L_next
    ''')
    for i in range(12): a(f'v_mov_b32 v{ACE+i}, 0')
    a(f'''
    s_cmp_ge_u32 s56, s57
    s_cbranch_scc1 L_flush
    s_cmp_ge_u32 s56, s61
    s_cbranch_scc1 L_bodyP
    ''')
    def body(D):
        t = 'D' if D else 'P'
        nds = 2 if D else 0
        a(f'L_body{t}:\ns_waitcnt lgkmcnt(0)')
        for i in range(4):
            a(f'v_mfma_f32_16x16x16_bf16 {vr(W+4*i,4)}, {vr(AA,2)}, {vr(BF+2*i,2)}, 0')
        a(f'ds_read_b64_tr_b16 {vr(RR,2)}, v{aR}')
        a(f'v_add_u32 v{DIA}, v{DI}, v{kbo}')
        for r in range(4): a(f'v_add_u32 v{AD+r}, v{SRC+r}, v{c16o}')
        if D:
            for i in range(2): a(f'v_lshrrev_b32 v{AD2+i}, 1, v{SRC2+i}\nv_add_u32 v{AD2+i}, v{AD2+i}, v{p16o}')
            a(f'ds_read2_b32 {vr(SRC2,2)}, v{aSRC2} offset0:32 offset1:34')
            a(f'v_add_u32 v{aSRC2}, 64, v{aSRC2}')
        else:
            a(f'ds_read_b64 {vr(AA,2)}, v{DIA}')
        a(f'''
        ds_read_b128 {vr(SRC,4)}, v{aSRC} offset:128
        ds_read_u16 v{DI}, v{aDI} offset:{256+6}
        v_add_u32 v{aSRC}, 64, v{aSRC}
        v_add_u32 v{aDI}, 0x80, v{aDI}
        v_add_u32 v{aR}, v{incR}, v{aR}
        s_add_u32 s56, s56, 1
        s_cmp_lg_u32 s64, 0
        s_cbranch_scc1 L_pfw{t}
        s_waitcnt vmcnt({nds})
        L_pfw{t}:
        s_waitcnt vmcnt({nds+3})
        s_mov_b32 s64, 0
        s_cmp_ge_u32 s56, s60
        ''')
        for r in range(4):
            g=G+4*r; sh=SH+4*(r&1)
            a(f'v_lshlrev_b64 {vr(sh,2)}, 16, {vr(g,2)}\nv_lshlrev_b64 {vr(sh+2,2)}, 16, {vr(g+2,2)}')
            if EXACT:
                for x in (g,g+1,g+2,g+3,sh+1,sh+3): a(f'v_and_b32 v{x}, 0xffff0000, v{x}')
            a(f'''
            v_fmac_f32 v{ACE}, v{W+r}, v{g}
            v_fmac_f32 v{ACE+2}, v{W+r}, v{g+1}
            v_fmac_f32 v{ACO}, v{W+4+r}, v{g+2}
            v_fmac_f32 v{ACO+2}, v{W+4+r}, v{g+3}
            s_cbranch_scc1 L_nl{t}{r}
            buffer_load_dwordx4 {vr(g,4)}, v{AD+r}, {S4(DV)}, 0 offen
            L_nl{t}{r}:
            v_fmac_f32 v{ACE+1}, v{W+r}, v{sh+1}
            v_fmac_f32 v{ACO+1}, v{W+4+r}, v{sh+3}
            v_mul_f32 v{W+8+r}, v{W+8+r}, v{sh}
            v_mul_f32 v{W+12+r}, v{W+12+r}, v{sh+2}
            ''')
        for i in range(4): a(f'v_cvt_pk_bf16_f32 v{TP+i}, v{W+8+2*i}, v{W+9+2*i}')
        a('s_waitcnt lgkmcnt(3)')
        a(f'v_mfma_f32_16x16x16_bf16 {vr(ACE,4)}, {vr(RR,2)}, {vr(TP,2)}, {vr(ACE,4)}')
        a(f'v_mfma_f32_16x16x16_bf16 {vr(ACO,4)}, {vr(RR,2)}, {vr(TP+2,2)}, {vr(ACO,4)}')
        if D:
            for i in range(4):
                a(f'v_mfma_f32_16x16x16_bf16 {vr(W+4*i,4)}, {vr(AA,2)}, {vr(BF+8+2*i,2)}, 0')
            a(f'''
            ds_read_b64 {vr(AA,2)}, v{DIA}
            s_cbranch_scc0 L_dw4
            s_waitcnt vmcnt(0)
            L_dw4:
            s_waitcnt vmcnt(4)
            ''')
            for i in range(2):
                for d in range(2): a(f'v_mov_b32 v{SH+2*i+d}, v{GS+4*i+d}')
            for i in range(2):
                for d in range(2): a(f'v_mov_b32_dpp v{GS+4*i+d}, v{GS+4*i+2+d} row_ror:8 row_mask:0xf bank_mask:0xc')
            for i in range(2):
                for d in range(2): a(f'v_mov_b32_dpp v{GS+4*i+2+d}, v{SH+2*i+d} row_ror:8 row_mask:0xf bank_mask:0x3')
            for r in range(4): a(f'v_lshlrev_b64 {vr(SH+2*r,2)}, 16, {vr(GS+2*r,2)}')
            if EXACT:
                for r in range(4):
                    for x in (GS+2*r,GS+2*r+1,SH+2*r+1): a(f'v_and_b32 v{x}, 0xffff0000, v{x}')
            for r in range(4):
                a(f'v_fmac_f32 v{ACS+1}, v{W+4+r}, v{GS+2*r}\nv_fmac_f32 v{ACS+3}, v{W+12+r}, v{GS+2*r+1}')
            a(f'''
            s_cmp_ge_u32 s56, s61
            s_cbranch_scc1 L_nds
            buffer_load_dwordx4 {vr(GS,4)}, v{AD2}, {S4(DS)}, 0 offen
            buffer_load_dwordx4 {vr(GS+4,4)}, v{AD2+1}, {S4(DS)}, 0 offen
            L_nds:
            ''')
            for r in range(4):
                a(f'v_fmac_f32 v{ACS}, v{W+r}, v{SH+2*r}\nv_fmac_f32 v{ACS+2}, v{W+8+r}, v{SH+2*r+1}')
        a(f'''
        s_cmp_lt_u32 s56, s57
        s_cbranch_scc1 L_body{t}
        ''')
    body(True)
    a('s_branch L_flush')
    body(False)
    a(f'''
    L_flush:
    s_cmp_lg_u32 s56, s74
    s_cbranch_scc1 L_fl1
    s_waitcnt vmcnt(0)
    L_fl1:
    s_or_b32 s65, s14, s17
    s_cmp_lg_u32 s65, 0
    s_cbranch_scc1 L_multi
    L_fin:
    v_add_u32 v{SH}, v{ORD}, v{odv}
    s_nop 2
    ''')
    T=W
    for k in range(3):
        a(f'''
        v_cvt_pk_bf16_f32 v{T}, v{ACE+k}, v{ACO+k}
        v_lshlrev_b32 v{T+1}, 16, v{RESV+k}
        v_and_b32 v{T+2}, 0xffff0000, v{RESV+k}
        v_lshlrev_b32 v{T+3}, 16, v{T}
        v_and_b32 v{T}, 0xffff0000, v{T}
        v_add_f32 v{T+1}, v{T+1}, v{T+3}
        v_add_f32 v{T+2}, v{T+2}, v{T}
        v_cvt_pk_bf16_f32 v{T+4+k}, v{T+1}, v{T+2}
        ''')
    a(f'''
    s_cmp_ge_u32 s62, 2
    s_cbranch_scc1 L_fl2
    v_add_u32 v{SH+1}, v{ORD}, v{ods}
    ''')
    for k in range(2):
        a(f'''
        v_cvt_pk_bf16_f32 v{T}, v{ACS+2*k}, v{ACS+2*k+1}
        v_lshlrev_b32 v{T+1}, 16, v{RESS[0]+k}
        v_and_b32 v{T+2}, 0xffff0000, v{RESS[0]+k}
        v_lshlrev_b32 v{T+3}, 16, v{T}
        v_and_b32 v{T}, 0xffff0000, v{T}
        v_add_f32 v{T+1}, v{T+1}, v{T+3}
        v_add_f32 v{T+2}, v{T+2}, v{T}
        v_cvt_pk_bf16_f32 v{T+8+k}, v{T+1}, v{T+2}
        ''')
    a(f'''
    buffer_store_dwordx2 {vr(T+8,2)}, v{SH+1}, {S4(OUT)}, 0 offen{NT}
    L_fl2:
    ''')
    for k in range(3): a(f'buffer_store_dword v{T+4+k}, v{SH}, {S4(OUT)}, 0 offen offset:{256*k}{NT}')
    a(f'''
    s_mov_b32 s64, 1
    L_next:
    ''')
    for i in range(3): a(f'v_mov_b32 v{ORD+i}, v{ORD+i+1}')
    a(f'''
    s_cmp_lg_u32 s56, s74
    s_cbranch_scc1 L_nx1
    s_waitcnt vmcnt(0)
    L_nx1:
    ''')
    for i in range(9): a(f'v_mov_b32 v{RESV+i}, v{RESV+i+3}')
    for i in range(2): a(f'v_mov_b32 v{RESS[0]+i}, v{RESS[1]+i}')
    a(f'''
    s_mov_b32 s57, s58
    s_mov_b32 s58, s59
    s_mov_b32 s59, s60
    s_add_u32 s62, s62, 1
    s_cmp_lt_u32 s62, 4
    s_cbranch_scc1 L_group
    s_cmp_eq_u32 s17, 0
    s_cbranch_scc1 L_end
    s_mul_i32 s65, s15, 12
    s_add_u32 s14, s14, s65
    s_waitcnt vmcnt(0) lgkmcnt(0)
    s_barrier
    s_branch L_round
    L_multi:
    v_lshl_add_u32 v{SH}, v{c16o}, 2, v{ORD}
    s_cmp_eq_u32 s14, 0
    s_cbranch_scc1 L_m1
    buffer_load_dwordx4 {vr(W,4)}, v{SH}, {S4(PT)}, 0 offen sc1
    buffer_load_dwordx4 {vr(W+4,4)}, v{SH}, {S4(PT)}, 0 offen offset:16 sc1
    buffer_load_dwordx4 {vr(W+8,4)}, v{SH}, {S4(PT)}, 0 offen offset:32 sc1
    s_waitcnt vmcnt(0)
    ''')
    for i in range(12): a(f'v_add_f32 v{ACE+i}, v{ACE+i}, v{W+i}')
    a(f'''
    L_m1:
    s_cmp_eq_u32 s17, 0
    s_cbranch_scc1 L_fin
    s_nop 4
    buffer_store_dwordx4 {vr(ACE,4)}, v{SH}, {S4(PT)}, 0 offen sc1
    buffer_store_dwordx4 {vr(ACO,4)}, v{SH}, {S4(PT)}, 0 offen offset:16 sc1
    buffer_store_dwordx4 {vr(ACS,4)}, v{SH}, {S4(PT)}, 0 offen offset:32 sc1
    s_waitcnt vmcnt(0)
    s_branch L_next
    L_end:
    s_endpgm
    ''')
```

```python
import sys
from asmlib import *
from consts import *
import k1, k2
HEAD = open('standalone__molecular_angular_painn__graph.s.ref').read().split('; Override launch')[0]
def desc(name, vg, sg):
    return f'''.p2align 6
.amdhsa_kernel {name}
  .amdhsa_next_free_vgpr {vg}
  .amdhsa_next_free_sgpr {sg}
  .amdhsa_accum_offset {vg}
  .amdhsa_group_segment_fixed_size 0
  .amdhsa_kernarg_size 88
  .amdhsa_user_sgpr_count 2
  .amdhsa_user_sgpr_kernarg_segment_ptr 1
  .amdhsa_system_sgpr_workgroup_id_x 1
.end_amdhsa_kernel
'''
def build(**kw):
    a=A(); k1.gen_k1(a); l1=hazard_pass(a.l)
    a=A(); k2.gen_k2(a, **kw); l2=hazard_pass(a.l)
    s = HEAD
    s += f'; @launch kernel=prep_kernel grid=({NWG1},1,1) block=(1024,1,1) lds=163840\n'
    s += f'; @launch kernel=main_kernel grid=(256,1,1) block=(1024,1,1) lds={k2.LDS2}\n'
    s += '.amdgcn_target "amdgcn-amd-amdhsa--gfx950"\n.text\n'
    s += '\n'.join(l1)+'\n'+'\n'.join(l2)+'\n'
    s += '.section .rodata,"a"\n' + desc('prep_kernel',128,80) + desc('main_kernel',128,80)
    return s
if __name__=='__main__':
    out = sys.argv[1] if len(sys.argv)>1 else 'standalone__molecular_angular_painn__graph.s'
    open(out,'w').write(build())
    print('wrote',out)
```
